```python
import torch

def _softmax(x, axis=-1):
    return torch.softmax(x, dim=axis)
def _gelu(x):
    return torch.nn.functional.gelu(x, approximate="tanh")
def _silu(x):
    return torch.nn.functional.silu(x)
def _sigmoid(x):
    return torch.sigmoid(x)
def _layernorm(x, axis=-1, eps=1e-5):
    m = x.mean(dim=axis, keepdim=True)
    v = x.var(dim=axis, keepdim=True, unbiased=False)
    return (x - m) / torch.sqrt(v + eps)
def _scatter_add(tgt, idx, src, axis=0):
    return tgt.clone().index_add_(axis, idx, src)
def _segment_sum(src, seg, n):
    out = torch.zeros((n,) + src.shape[1:], dtype=src.dtype)
    return out.index_add_(0, seg, src)
def _pad(x, pw):
    flat = tuple(v for pair in reversed(pw) for v in pair)
    return torch.nn.functional.pad(x, flat)

kernel_name = 'sequential_preLN__mha_block__dense_activation_gelu__prompt'

def setup_inputs():

    _w = (lambda a: (lambda t: t.to(torch.bfloat16) if t.is_floating_point() else t)(torch.as_tensor(a)))
    def _A_setup():
        B, S, D, H = 1, 2048, 576, 32
        return {
            "x": _w((lambda *s: torch.randn(*s, dtype=torch.bfloat16) * 0.05)(B, S, D)),
            "wqkv": _w((lambda *s: torch.randn(*s, dtype=torch.bfloat16) * 0.05)(D, 3 * D)),
            "wo": _w((lambda *s: torch.randn(*s, dtype=torch.bfloat16) * 0.05)(D, D)),
        }
    _A_in = _A_setup()

    def _B_setup():
        B, S, D, F = 1, 2048, 576, 4608
        return {
            "x": _w((lambda *s: torch.randn(*s, dtype=torch.bfloat16) * 0.05)(B, S, D)),
            "w1": _w((lambda *s: torch.randn(*s, dtype=torch.bfloat16) * 1.6)(D, F) * (D ** -0.5)),
            "b1": _w((lambda *s: torch.randn(*s, dtype=torch.bfloat16) * 1.6)(F) * 0.01),
            "w2": _w((lambda *s: torch.randn(*s, dtype=torch.bfloat16) * 0.2)(F, D) * (F ** -0.5)),
            "b2": _w((lambda *s: torch.randn(*s, dtype=torch.bfloat16) * 0.2)(D) * 0.01),
        }
    _B_in = _B_setup()

    return {
        "A_x": _A_in["x"],
        "A_wqkv": _A_in["wqkv"],
        "A_wo": _A_in["wo"],
        "B_x": _B_in["x"],
        "B_w1": _B_in["w1"],
        "B_b1": _B_in["b1"],
        "B_w2": _B_in["w2"],
        "B_b2": _B_in["b2"],
    }

def reference(A_x, A_wqkv, A_wo, B_x, B_w1, B_b1, B_w2, B_b2):
    def _A_ref(x, wqkv, wo):
        B, S, D = x.shape
        H = 32
        Dh = D // H
        qkv = (lambda x, *d: x.permute(*d))((x @ wqkv).reshape(B, S, 3, H, Dh), 2, 0, 3, 1, 4)
        q, k, v = qkv[0], qkv[1], qkv[2]
        scores = torch.einsum("bhqd,bhkd->bhqk", q, k) * (Dh ** -0.5)
        p = _softmax(scores, axis=-1)
        o = torch.einsum("bhqk,bhkd->bhqd", p, v)
        return (lambda x, *d: x.permute(*d))(o, 0, 2, 1, 3).reshape(B, S, D) @ wo

    def _B_ref(x, w1, b1, w2, b2):
        h = torch.einsum("bsd,df->bsf", x, w1) + b1
        h = _gelu(h)
        return torch.einsum("bsf,fd->bsd", h, w2) + b2

    x = A_x
    h = x + _A_ref(_layernorm(x, axis=-1), A_wqkv, A_wo)
    h2 = h + _B_ref(_layernorm(h, axis=-1), B_w1, B_b1, B_w2, B_b2)
    return h2
```

```python
import re
TRANS = ("v_exp_", "v_log_", "v_rcp_", "v_rsq_", "v_sqrt_", "v_sin_", "v_cos_")
def regs(tok):
    tok = tok.strip()
    tok = tok.lstrip("-").strip("|")
    m = re.fullmatch(r"([vas])(\d+)", tok)
    if m: return {(m.group(1), int(m.group(2)))}
    m = re.fullmatch(r"([vas])\[(\d+):(\d+)\]", tok)
    if m: return {(m.group(1), i) for i in range(int(m.group(2)), int(m.group(3))+1)}
    if tok == "vcc": return {("s", "vcc")}
    if tok == "exec": return {("s", "exec")}
    if tok == "m0": return {("s", "m0")}
    return set()
class I:
    def __init__(s, text):
        s.text = text
        t = text.split(";")[0].strip()
        s.label = t.endswith(":"); s.dir = t.startswith(".") and not s.label
        s.op = ""; s.w = set(); s.r = set(); s.kind = "none"; s.states = 0
        if not t or s.label or s.dir: return
        t = re.sub(r"\b[a-z_]+:\[[^\]]*\]", "", t).strip()
        p = t.split(None, 1); s.op = op = p[0]
        ops = [o.strip() for o in p[1].split(",")] if len(p) > 1 else []
        if ops:
            last = ops[-1].split(); ops[-1] = last[0] if last else ""; s.mods = last[1:]
        else: s.mods = []
        s.states = 1
        R = [regs(o) for o in ops]
        U = lambda l: set().union(*l) if l else set()
        if op == "s_nop": s.states = int(ops[0])+1; s.kind = "salu"
        elif op.startswith(("v_mfma", "v_smfmac")):
            s.kind = "mfma"; s.w = R[0]
            s.passes = 4 if "16x16" in op else (16 if "_2b" in op else 8)
            if op.startswith("v_smfmac"): s.ab = R[1] | R[2] | R[3]; s.c = R[0]
            else: s.ab = R[1] | R[2]; s.c = R[3]
            s.r = s.ab | s.c
        elif op.startswith("v_"):
            s.kind = "valu"; s.w = set(R[0]); s.r = U(R[1:])
            if op.startswith("v_cmpx"): s.w |= {("s","exec")}
            if op.startswith(("v_dot2c", "v_fmac", "v_mac")) or "sdwa" in op or "dpp" in op: s.r |= R[0]
            if op.startswith("v_permlane"): s.w = R[0] | R[1]; s.r = R[0] | R[1]
            if op.startswith(("v_add_co", "v_addc", "v_sub_co")): s.w |= R[1]
        elif op.startswith(("buffer_", "global_")):
            s.kind = "vmem"; s.lds = "lds" in s.mods or "_lds_" in op
            if "load" in op and not s.lds: s.w = R[0]; s.r = U(R[1:])
            else: s.r = U(R)
            if "d16" in op: s.r |= R[0]
            s.sdata = R[0] if ("store" in op and op.startswith("buffer_")) else set()
        elif op.startswith("ds_"):
            s.kind = "ds"
            if "read" in op or "permute" in op or "swizzle" in op: s.w = R[0]; s.r = U(R[1:])
            else: s.r = U(R)
        elif op.startswith("s_"):
            s.kind = "salu"
            if op.startswith(("s_cmp", "s_cbranch", "s_branch", "s_waitcnt", "s_barrier", "s_endpgm", "s_setprio", "s_sleep")): s.r = U(R)
            else:
                s.w = set(R[0]) if R else set(); s.r = U(R[1:])
                if "saveexec" in op: s.w |= {("s","exec")}
def need(p, c):
    n = 0
    isv = lambda S: {x for x in S if x[0] in "va"}
    iss = lambda S: {x for x in S if x[0] == "s"}
    if p.kind == "valu":
        wv = isv(p.w); ws = iss(p.w)
        dot = p.op.startswith("v_dot")
        if c.kind == "mfma" and wv & c.r: n = max(n, 3 if dot else 2)
        if c.kind == "mfma" and ("s","exec") in ws: n = max(n, 4)
        if dot and c.kind in ("valu","vmem","ds") and wv & (c.r | c.w):
            if c.op == p.op:
                t = c.text.split(";")[0].split(None,1)[1].split(",")
                if wv & (regs(t[1]) | regs(t[2].split()[0])): n = max(n, 3)
            else: n = max(n, 3)
        if p.op.startswith(TRANS) and c.kind == "valu" and not c.op.startswith(TRANS) and wv & c.r: n = max(n, 1)
        if p.op.startswith(TRANS) and c.kind in ("vmem","ds") and wv & c.r: n = max(n, 1)
        if ("sdwa" in p.op or "op_sel" in p.text) and c.kind == "valu" and wv & (c.r | c.w): n = max(n, 1)
        if c.kind == "valu" and c.op.startswith(("v_readfirstlane", "v_readlane")) and wv & c.r: n = max(n, 1)
        if c.kind == "valu" and (c.op.startswith("v_permlane") or "dpp" in c.op) and wv & c.r: n = max(n, 2)
        if c.kind == "valu" and "dpp" in c.op and ("s","exec") in ws: n = max(n, 5)
        if c.kind == "vmem" and ws & c.r: n = max(n, 5)
        if c.kind == "valu" and ws & c.r:
            if c.op.startswith(("v_readlane", "v_writelane")): n = max(n, 4)
            else: n = max(n, 2)
        if c.kind == "salu" and ws & c.r: n = max(n, 1)
    if p.kind == "mfma":
        full = {4: 8, 8: 12, 16: 20}[p.passes]
        if c.kind == "mfma":
            if p.w & c.ab: n = max(n, full)
            if p.w & c.c and not (p.w == c.c and p.passes == c.passes): n = max(n, full-2)
            if p.w & c.w and not (p.w == c.w and p.passes == c.passes): n = max(n, full-2)
        if c.kind in ("valu", "vmem", "ds") and p.w & (c.r | c.w): n = max(n, full)
        if c.kind == "valu" and isv(p.c) & c.w: n = max(n, p.passes-1)
    if p.kind == "salu" and ("s","m0") in p.w and c.kind == "vmem" and c.lds: n = max(n, 1)
    if p.kind == "vmem" and len(getattr(p, "sdata", ())) > 2 and c.kind == "valu" and p.sdata & c.w: n = max(n, 2)
    if p.kind == "vmem" and len(getattr(p, "sdata", ())) > 2 and c.kind in ("vmem","ds") and p.sdata & c.w: n = max(n, 1)
    if p.kind == "ds" and "write" in p.op and c.kind == "valu" and len(p.r) > 3 and p.r & c.w: n = max(n, 2)
    return n
def deficit(hist, c):
    d = 0; dist = 0
    for p in reversed(hist):
        if dist >= 20: break
        if p.states == 0: continue
        d = max(d, need(p, c) - dist)
        dist += p.states
    return d
def pad(lines, verbose=False):
    ins = [I(l) for l in lines]
    out = []
    for c in ins:
        if c.states:
            d = deficit(out[-60:], c)
            if d > 0:
                if verbose: print(f"pad {d} before: {c.text.strip()}")
                while d > 0:
                    k = min(d, 16); out.append(I(f"    s_nop {k-1}")); d -= k
        out.append(c)
    lab = {c.text.split(";")[0].strip()[:-1]: i for i, c in enumerate(out) if c.label}
    for i, c in enumerate(out):
        if c.op.startswith(("s_cbranch", "s_branch")):
            tgt = c.text.split(";")[0].split()[1]
            if tgt in lab:
                hist = out[max(0, i-60):i+1]
                j = lab[tgt]; cnt = 0
                while j < len(out) and cnt < 24:
                    if out[j].states:
                        d = deficit(hist, out[j])
                        if d > 0: raise Exception(f"hazard {d} across branch to {tgt} at: {out[j].text}")
                        cnt += out[j].states
                        hist = hist + [out[j]]
                        if out[j].op in ("s_branch", "s_endpgm"): break
                    j += 1
    return [c.text for c in out]
class Asm:
    def __init__(s): s.l = []
    def __call__(s, text):
        for t in text.strip("\n").split("\n"):
            t = t.strip()
            if not t: continue
            s.l.append(t if (t.endswith(":") or t.startswith(".")) else "    " + t)
    def srd(s, d, b, size, off=0):
        if off:
            s(f"s_add_u32 s{d}, s{b}, {hex(off)}\ns_addc_u32 s{d+1}, s{b+1}, 0")
        else:
            s(f"s_mov_b32 s{d}, s{b}\ns_mov_b32 s{d+1}, s{b+1}")
        s(f"s_mov_b32 s{d+2}, {hex(size)}\ns_mov_b32 s{d+3}, 0x20000")
def vr(a, n=1, p="v"): return f"{p}{a}" if n == 1 else f"{p}[{a}:{a+n-1}]"
```

```python
from asm import *
WS_QK = 0x0000000
WS_V  = 0x0500000
WS_O  = 0x0800000
WS_WO = 0x0B00000
WS_H  = 0x0C00000
WS_W1 = 0x1000000
WS_W2 = WS_W1 + 663552
WS_P  = 0x2000000
SZ_X = 2048*1152
def f2u(x):
    import struct
    return hex(struct.unpack("<I", struct.pack("<f", x))[0])
```

```python
import sys, importlib
sys.path.insert(0, "gen")
from common import *
NAME = "sequential_preLN__mha_block__dense_activation_gelu__prompt"
def stamp(lines, ki):
    pre = Asm()
    pre("""
    s_memrealtime s[90:91]
    s_memtime s[100:101]
    v_lshrrev_b32 v1, 6, v0
    s_nop 0
    v_readfirstlane_b32 s89, v1
    s_mov_b32 s88, s2
    """)
    post = Asm()
    post(f"""
    s_waitcnt vmcnt(0) lgkmcnt(0)
    s_memrealtime s[92:93]
    s_memtime s[86:87]
    s_load_dwordx2 s[94:95], s[0:1], 80
    s_waitcnt lgkmcnt(0)
    """)
    post.srd(96, 94, 0x40000, 0x3800000 + ki*0x40000)
    post("""
    s_mov_b64 exec, 1
    s_lshl_b32 s88, s88, 4
    s_add_u32 s88, s88, s89
    s_lshl_b32 s88, s88, 4
    v_mov_b32 v0, s90
    v_mov_b32 v1, s92
    v_mov_b32 v2, s100
    v_mov_b32 v3, s86
    v_mov_b32 v4, s88
    buffer_store_dwordx4 v[0:3], v4, s[96:99], 0 offen
    """)
    out = list(pre.l)
    for l in lines:
        if l.strip() == "s_endpgm": out += post.l
        out.append(l)
    return out
def build(kernels, out, verbose=False):
    ref = open(f"cdna_kernels/{NAME}.s.ref").read().split("\n")
    hdr = [l for l in ref if l.startswith(";") and "@launch" not in l and "Override" not in l and "Harness parses" not in l]
    L = list(hdr)
    single = len(kernels) == 1 and kernels[0][0] == NAME + "_kernel"
    for (lab, fn, g, b, lds, vg, acc) in kernels:
        if single: L.append(f"; @launch grid=({g},1,1) block=({b},1,1) lds={lds}")
        else: L.append(f"; @launch kernel={lab} grid=({g},1,1) block=({b},1,1) lds={lds}")
    L.append('.amdgcn_target "amdgcn-amd-amdhsa--gfx950"'); L.append(".text")
    for (lab, fn, g, b, lds, vg, acc) in kernels:
        a = Asm(); fn(a)
        if "-t" in sys.argv: a.l = stamp(a.l, [k[0] for k in kernels].index(lab))
        L += [f".globl {lab}", ".p2align 8", f".type {lab},@function", f"{lab}:"]
        L += pad(a.l, verbose)
    L += ['.section .rodata,"a"']
    for (lab, fn, g, b, lds, vg, acc) in kernels:
        L += [".p2align 6", f".amdhsa_kernel {lab}", f"  .amdhsa_next_free_vgpr {vg}", "  .amdhsa_next_free_sgpr 102",
              f"  .amdhsa_accum_offset {acc}", "  .amdhsa_group_segment_fixed_size 0", "  .amdhsa_kernarg_size 88",
              "  .amdhsa_user_sgpr_count 2", "  .amdhsa_user_sgpr_kernarg_segment_ptr 1",
              "  .amdhsa_system_sgpr_workgroup_id_x 1", ".end_amdhsa_kernel"]
    open(out, "w").write("\n".join(L) + "\n")
if __name__ == "__main__":
    ks = []
    which = sys.argv[1].split(",")
    out = sys.argv[2] if len(sys.argv) > 2 else f"cdna_kernels/{NAME}.s"
    for w in which:
        m = importlib.import_module(w)
        ks.append(m.DESC)
    build(ks, out, "-v" in sys.argv)
```

```python
import sys, importlib
sys.path.insert(0, "gen")
from common import *
NAME = "sequential_preLN__mha_block__dense_activation_gelu__prompt"
def stamp(lines, ki, vm):
    pre = Asm()
    pre("""
    s_memrealtime s[90:91]
    s_memtime s[100:101]
    v_lshrrev_b32 v1, 6, v0
    s_nop 0
    v_readfirstlane_b32 s89, v1
    s_mov_b32 s88, s2
    s_mov_b32 s85, 0
    """)
    pre(f"v_mov_b32 v{vm}, 0")
    mk = Asm()
    mk(f"""
    s_memtime s[86:87]
    s_waitcnt lgkmcnt(0)
    s_lshl_b64 exec, 1, s85
    s_sub_u32 s86, s86, s100
    v_mov_b32 v{vm}, s86
    s_mov_b64 exec, -1
    s_add_u32 s85, s85, 1
    """)
    if "-r" in sys.argv: mk.l = [l.replace("s_memtime", "s_memrealtime").replace("s86, s100", "s86, 0") for l in mk.l]
    post = Asm()
    post(f"""
    s_waitcnt vmcnt(0) lgkmcnt(0)
    s_memrealtime s[92:93]
    s_memtime s[86:87]
    s_load_dwordx2 s[94:95], s[0:1], 80
    s_waitcnt lgkmcnt(0)
    """)
    post.srd(96, 94, 0x40000, 0x3800000 + ki*0x40000)
    post("""
    s_mov_b64 exec, 1
    s_lshl_b32 s88, s88, 4
    s_add_u32 s88, s88, s89
    s_lshl_b32 s88, s88, 4
    v_mov_b32 v0, s90
    v_mov_b32 v1, s92
    v_mov_b32 v2, s100
    v_mov_b32 v3, s86
    v_mov_b32 v4, s88
    buffer_store_dwordx4 v[0:3], v4, s[96:99], 0 offen
    s_mov_b64 exec, -1
    v_mbcnt_lo_u32_b32 v5, -1, 0
    v_mbcnt_hi_u32_b32 v5, -1, v5
    s_lshl_b32 s88, s88, 4
    v_lshlrev_b32 v5, 2, v5
    """)
    post.srd(96, 94, 0x200000, 0x4000000 + ki*0x200000)
    post(f"buffer_store_dword v{vm}, v5, s[96:99], s88 offen")
    out = list(pre.l)
    for l in lines:
        if l.strip() == "s_endpgm": out += post.l
        if l.strip() == "MARK": out += (mk.l if "-nm" not in sys.argv else [])
        else: out.append(l)
    return out
def build(kernels, out, verbose=False):
    ref = open(f"cdna_kernels/{NAME}.s.ref").read().split("\n")
    hdr = [l for l in ref if l.startswith(";") and "@launch" not in l and "Override" not in l and "Harness parses" not in l]
    L = list(hdr)
    single = len(kernels) == 1 and kernels[0][0] == NAME + "_kernel"
    for (lab, fn, g, b, lds, vg, acc) in kernels:
        if single: L.append(f"; @launch grid=({g},1,1) block=({b},1,1) lds={lds}")
        else: L.append(f"; @launch kernel={lab} grid=({g},1,1) block=({b},1,1) lds={lds}")
    L.append('.amdgcn_target "amdgcn-amd-amdhsa--gfx950"'); L.append(".text")
    for (lab, fn, g, b, lds, vg, acc) in kernels:
        a = Asm(); fn(a)
        if "-t" in sys.argv: a.l = stamp(a.l, [k[0] for k in kernels].index(lab), vg)
        else: a.l = [l for l in a.l if l.strip() != "MARK"]
        L += [f".globl {lab}", ".p2align 8", f".type {lab},@function", f"{lab}:"]
        L += pad(a.l, verbose)
    L += ['.section .rodata,"a"']
    for (lab, fn, g, b, lds, vg, acc) in kernels:
        if "-t" in sys.argv: vg += 4; acc += 4
        L += [".p2align 6", f".amdhsa_kernel {lab}", f"  .amdhsa_next_free_vgpr {vg}", "  .amdhsa_next_free_sgpr 102",
              f"  .amdhsa_accum_offset {acc}", "  .amdhsa_group_segment_fixed_size 0", "  .amdhsa_kernarg_size 88",
              "  .amdhsa_user_sgpr_count 2", "  .amdhsa_user_sgpr_kernarg_segment_ptr 1",
              "  .amdhsa_system_sgpr_workgroup_id_x 1", ".end_amdhsa_kernel"]
    open(out, "w").write("\n".join(L) + "\n")
if __name__ == "__main__":
    ks = []
    which = sys.argv[1].split(",")
    out = sys.argv[2] if len(sys.argv) > 2 else f"cdna_kernels/{NAME}.s"
    for w in which:
        m = importlib.import_module(w)
        ks.append(m.DESC)
    build(ks, out, "-v" in sys.argv)
```

```python
from asm import *
WS_QK = 0x0000000
WS_V  = 0x0500000
WS_O  = 0x0800000
WS_WO = 0x0B00000
WS_H  = 0x0C00000
WS_W1 = 0x1000000
WS_W2 = WS_W1 + 663552
WS_P  = 0x2000000
SZ_X = 2048*1152
def f2u(x):
    import struct
    return hex(struct.unpack("<I", struct.pack("<f", x))[0])
WS_F  = 0x3400000
F2, F3, F4, FS, FSZ = 0, 0x8400, 0x4000, 0x8000, 0x18400
def sh_loads(LB, mods=""):
    r = []
    for ss in range(2):
        for j in range(8):
            terms = [68]*ss + [69]*(j >> 2) + [70]*((j >> 1) & 1) + [71]*(j & 1)
            src = "s72"; t = []
            for tm in terms:
                t.append(f"s_add_u32 s80, {src}, s{tm}"); src = "s80"
            t.append(f"buffer_load_dwordx2 {vr(LB+2*(8*ss+j),2)}, v5, s[64:67], {src} offen {mods}")
            r.append("\n".join(t))
    return r
def sh_stores(LB, srd):
    r = []
    for ss in range(2):
        for t in range(4):
            D = LB + 32 + 4*(4*ss + t); x = []
            for jp in range(4):
                lo = LB + 2*(8*ss + 2*jp) + (t >> 1); hi = lo + 2
                x.append(f"v_perm_b32 v{D+jp}, v{hi}, v{lo}, s{82 + (t & 1)}")
            if ss: x.append(f"s_add_u32 s{76+t}, s{76+t}, s73")
            x.append(f"buffer_store_dwordx4 {vr(D,4)}, v6, {srd}, s{76+t} offen")
            r.append("\n".join(x))
    return r
```
